```python
import torch

def _softmax(x, axis=-1):
    return torch.softmax(x, dim=axis)
def _gelu(x):
    return torch.nn.functional.gelu(x, approximate="tanh")
def _silu(x):
    return torch.nn.functional.silu(x)
def _sigmoid(x):
    return torch.sigmoid(x)
def _layernorm(x, axis=-1, eps=1e-5):
    m = x.mean(dim=axis, keepdim=True)
    v = x.var(dim=axis, keepdim=True, unbiased=False)
    return (x - m) / torch.sqrt(v + eps)
def _scatter_add(tgt, idx, src, axis=0):
    return tgt.clone().index_add_(axis, idx, src)
def _segment_sum(src, seg, n):
    out = torch.zeros((n,) + src.shape[1:], dtype=src.dtype)
    return out.index_add_(0, seg, src)
def _pad(x, pw):
    flat = tuple(v for pair in reversed(pw) for v in pair)
    return torch.nn.functional.pad(x, flat)

kernel_name = 'interleave_layers__spectral_fnet__geglu_ffn__prompt'

def setup_inputs():

    _w = (lambda a: (lambda t: t.to(torch.bfloat16) if t.is_floating_point() else t)(torch.as_tensor(a)))
    def _A_setup():
        B, S, D = 1, 2048, 512
        ns = torch.arange(S)[:, None] * torch.arange(S)[None, :]
        nd = torch.arange(D)[:, None] * torch.arange(D)[None, :]
        Ws_re = torch.cos(-2.0 * torch.pi * ns / S).to(float)
        Ws_im = torch.sin(-2.0 * torch.pi * ns / S).to(float)
        Wd_re = torch.cos(-2.0 * torch.pi * nd / D).to(float)
        Wd_im = torch.sin(-2.0 * torch.pi * nd / D).to(float)
        return {
            "x": _w((lambda *s: torch.randn(*s, dtype=torch.bfloat16) * 0.05)(B, S, D)),
            "dft_seq_re": _w(Ws_re),
            "dft_seq_im": _w(Ws_im),
            "dft_hid_re": _w(Wd_re),
            "dft_hid_im": _w(Wd_im),
        }
    _A_in = _A_setup()

    def _B_setup():
        B, S, D, F = 1, 2048, 512, 1792
        return {
            "x": _w((lambda *s: torch.randn(*s, dtype=torch.bfloat16) * 0.05)(B, S, D)),
            "w_gate": _w((lambda *s: torch.randn(*s, dtype=torch.bfloat16) * 0.4)(D, F)),
            "w_up": _w((lambda *s: torch.randn(*s, dtype=torch.bfloat16) * 0.4)(D, F)),
            "w_down": _w((lambda *s: torch.randn(*s, dtype=torch.bfloat16) * 0.4)(F, D)),
        }
    _B_in = _B_setup()

    return {
        "A_x": _A_in["x"],
        "A_dft_seq_re": _A_in["dft_seq_re"],
        "A_dft_seq_im": _A_in["dft_seq_im"],
        "A_dft_hid_re": _A_in["dft_hid_re"],
        "A_dft_hid_im": _A_in["dft_hid_im"],
        "B_x": _B_in["x"],
        "B_w_gate": _B_in["w_gate"],
        "B_w_up": _B_in["w_up"],
        "B_w_down": _B_in["w_down"],
    }

def reference(A_x, A_dft_seq_re, A_dft_seq_im, A_dft_hid_re, A_dft_hid_im, B_x, B_w_gate, B_w_up, B_w_down):
    def _A_ref(x, dft_seq_re, dft_seq_im, dft_hid_re, dft_hid_im):
        a = torch.einsum("bsd,ed->bse", x, dft_hid_re)
        b = torch.einsum("bsd,ed->bse", x, dft_hid_im)
        y = torch.einsum("ts,bse->bte", dft_seq_re, a) - torch.einsum("ts,bse->bte", dft_seq_im, b)
        return y

    def _B_ref(x, w_gate, w_up, w_down):
        return (_gelu(x @ w_gate) * (x @ w_up)) @ w_down

    x = A_x
    x = x + _A_ref(_layernorm(x, axis=-1), A_dft_seq_re, A_dft_seq_im, A_dft_hid_re, A_dft_hid_im)
    x = x + _B_ref(_layernorm(x, axis=-1), B_w_gate, B_w_up, B_w_down)
    x = x + _A_ref(_layernorm(x, axis=-1), A_dft_seq_re, A_dft_seq_im, A_dft_hid_re, A_dft_hid_im)
    x = x + _B_ref(_layernorm(x, axis=-1), B_w_gate, B_w_up, B_w_down)
    return x
```

```python
NAME = "interleave_layers__spectral_fnet__geglu_ffn__prompt"
MB = 1 << 20
WS_YP, WS_X1, WS_XH, WS_H, WS_X2 = 0, 2*MB, 4*MB, 6*MB, 14*MB
K_AX, K_SRE, K_SIM, K_HRE, K_HIM, K_WG, K_WU, K_WD, K_OUT, K_DBG, K_WS = 0, 8, 16, 24, 32, 48, 56, 64, 72, 80, 88

class Asm:
    def __init__(self):
        self.lines = []
        self.uid = 0
    def __call__(self, s):
        for l in s.strip("\n").split("\n"):
            self.lines.append("    " + l.strip() if not l.strip().endswith(":") else l.strip())
    def label(self, base):
        self.uid += 1
        return f"L_{base}_{self.uid}"
    def text(self):
        return "\n".join(self.lines) + "\n"

def vr(a, n=1):
    return f"v{a}" if n == 1 else f"v[{a}:{a+n-1}]"
def sr(a, n=1):
    return f"s{a}" if n == 1 else f"s[{a}:{a+n-1}]"

def load_ptr(a, sdst, koff):
    a(f"s_load_dwordx2 {sr(sdst,2)}, s[0:1], {koff}")

def make_srd(a, sd, sptr, nbytes, add=0):
    if add:
        a(f"s_add_u32 s{sd}, s{sptr}, {add}")
        a(f"s_addc_u32 s{sd+1}, s{sptr+1}, 0")
    else:
        a(f"s_mov_b32 s{sd}, s{sptr}")
        a(f"s_mov_b32 s{sd+1}, s{sptr+1}")
    a(f"s_mov_b32 s{sd+2}, {nbytes}")
    a(f"s_mov_b32 s{sd+3}, 0x00020000")

def kernel_header(name):
    return f".globl {name}\n.p2align 8\n.type {name},@function\n{name}:\n"

def kernel_desc(name, vgpr, sgpr=102):
    acc = (vgpr + 3)//4*4
    return (f".amdhsa_kernel {name}\n  .amdhsa_next_free_vgpr {vgpr}\n  .amdhsa_next_free_sgpr {sgpr}\n"
            f"  .amdhsa_accum_offset {acc}\n  .amdhsa_group_segment_fixed_size 0\n  .amdhsa_kernarg_size 96\n"
            f"  .amdhsa_user_sgpr_count 2\n  .amdhsa_user_sgpr_kernarg_segment_ptr 1\n"
            f"  .amdhsa_system_sgpr_workgroup_id_x 1\n.end_amdhsa_kernel\n")
```

```python
from gen_common import *
R_LDS_F, R_FSTR = 0, 1040
R_LDS_Z = 32*1040
R_ZPL = 6144
R_LDS = R_LDS_Z + 2*R_ZPL
def emit_R(a, layer):
    L = a.label
    done = L("r_done")
    a("s_cmp_ge_u32 s2, 256")
    a(f"s_cbranch_scc1 {done}")
    load_ptr(a, 4, K_AX if layer == 0 else K_WS)
    load_ptr(a, 36, K_SRE); load_ptr(a, 38, K_SIM); load_ptr(a, 40, K_HRE); load_ptr(a, 42, K_HIM); load_ptr(a, 44, K_WS)
    a("s_and_b32 s46, s2, 7"); a("s_lshl_b32 s46, s46, 1"); a("s_bfe_u32 s47, s2, 0x10003"); a("s_add_u32 s46, s46, s47")
    a("s_lshr_b32 s47, s2, 4")
    a("v_lshrrev_b32 v1, 6, v0"); a("s_nop 0"); a("v_readfirstlane_b32 s48, v1")
    a("v_and_b32 v2, 63, v0")
    a("v_and_b32 v3, 15, v2")
    a("v_lshrrev_b32 v4, 4, v2")
    a("s_waitcnt lgkmcnt(0)")
    make_srd(a, 8, 4, 2*MB, add=(0 if layer == 0 else WS_X2))
    make_srd(a, 12, 40, 512*1024); make_srd(a, 16, 42, 512*1024)
    make_srd(a, 20, 36, 8*MB); make_srd(a, 24, 38, 8*MB)
    make_srd(a, 28, 44, 2*MB, add=WS_YP)
    a("s_cmp_ge_u32 s48, 4")
    for i in range(4):
        a(f"s_cselect_b32 s{32+i}, s{16+i}, s{12+i}")
    a("s_and_b32 s49, s48, 3"); a("s_lshl_b32 s49, s49, 2")
    a("s_lshl_b32 s50, s47, 4"); a("s_add_u32 s50, s50, s49")
    a("s_mul_i32 s51, s48, 4160")
    a("v_lshlrev_b32 v5, 4, v2")
    for q in range(4):
        a(f"s_add_u32 s52, s50, {q}")
        if q == 0:
            a("s_cmp_eq_u32 s52, 0"); a("s_cselect_b32 s52, 256, s52")
        a("s_lshl_b32 s52, s52, 10")
        a(f"s_add_u32 m0, s51, {q*1040}")
        a("s_nop 0")
        a("buffer_load_dwordx4 v5, s[32:35], s52 offen lds")
    X = 64
    a("v_lshlrev_b32 v6, 4, v1"); a("v_add_u32 v6, v6, v3")
    a("v_lshlrev_b32 v7, 4, v6"); a("v_add_u32 v7, s46, v7"); a("v_lshlrev_b32 v7, 10, v7")
    a("v_lshl_add_u32 v7, v4, 4, v7")
    for s in range(16):
        a(f"buffer_load_dwordx4 {vr(X+4*s,4)}, v7, s[8:11], 0 offen offset:{64*s}")
    CR, CI = 128, 144
    a("v_lshlrev_b32 v8, 16, v6"); a("v_lshl_add_u32 v8, v4, 4, v8")
    for s in range(4):
        a(f"buffer_load_dwordx4 {vr(CR+4*s,4)}, v8, s[20:23], 0 offen offset:{64*s}")
        a(f"buffer_load_dwordx4 {vr(CI+4*s,4)}, v8, s[24:27], 0 offen offset:{64*s}")
    a("v_mul_u32_u24 v9, 1040, v3"); a("v_lshl_add_u32 v9, v4, 4, v9")
    a("v_mul_u32_u24 v10, s46, v6"); a("v_cvt_f32_u32 v10, v10"); a("v_mul_f32 v10, 0xba000000, v10")
    a("v_cos_f32 v11, v10"); a("v_sin_f32 v12, v10")
    ONE = 16
    for i in range(4): a(f"v_mov_b32 v{ONE+i}, 0x3f803f80")
    AR, AI, AS = 20, 24, 28
    for i in range(12): a(f"v_mov_b32 v{AR+i}, 0")
    a("v_mov_b32 v13, 0"); a("v_mov_b32 v14, 0")
    a("v_lshrrev_b32 v15, 3, v6"); a("v_lshlrev_b32 v15, 7, v15"); a("v_lshl_add_u32 v15, v6, 5, v15"); a("v_lshl_add_u32 v15, v4, 3, v15")
    a(f"v_add_u32 v15, {R_LDS_Z}, v15")
    a("s_waitcnt vmcnt(24)")
    a("s_barrier")
    FB = 32
    def fread(s):
        b = FB + 8*(s % 4)
        a(f"ds_read_b128 {vr(b,4)}, v9 offset:{64*s}")
        a(f"ds_read_b128 {vr(b+4,4)}, v9 offset:{16*1040 + 64*s}")
    fread(0); fread(1); fread(2)
    for s in range(16):
        if s + 3 < 16: fread(s+3)
        nl = min(3, 15 - s)*2
        a(f"s_waitcnt vmcnt({8 + 15 - s}) lgkmcnt({nl})")
        b = FB + 8*(s % 4); x = X + 4*s
        a(f"v_mfma_f32_16x16x32_bf16 {vr(AR,4)}, {vr(b,4)}, {vr(x,4)}, {vr(AR,4)}")
        a(f"v_dot2_f32_bf16 v13, v{x}, v{x}, v13"); a(f"v_dot2_f32_bf16 v14, v{x+1}, v{x+1}, v14")
        a(f"v_mfma_f32_16x16x32_bf16 {vr(AI,4)}, {vr(b+4,4)}, {vr(x,4)}, {vr(AI,4)}")
        a(f"v_dot2_f32_bf16 v13, v{x+2}, v{x+2}, v13"); a(f"v_dot2_f32_bf16 v14, v{x+3}, v{x+3}, v14")
        a(f"v_mfma_f32_16x16x32_bf16 {vr(AS,4)}, {vr(ONE,4)}, {vr(x,4)}, {vr(AS,4)}")
    a("s_nop 3")
    a("v_add_f32 v13, v13, v14"); a("s_nop 1"); a("v_mov_b32 v14, v13"); a("s_nop 1")
    a("v_permlane32_swap_b32 v13, v14"); a("s_nop 1"); a("v_add_f32 v13, v13, v14"); a("s_nop 1"); a("v_mov_b32 v14, v13"); a("s_nop 1")
    a("v_permlane16_swap_b32 v13, v14"); a("s_nop 1"); a("v_add_f32 v13, v13, v14")
    a("s_nop 4")
    a(f"v_mul_f32 v14, 0x3b000000, v{AS}")
    a("v_mul_f32 v13, 0x3b000000, v13")
    a("v_fma_f32 v13, -v14, v14, v13")
    a("v_add_f32 v13, 0x3727c5ac, v13")
    a("v_rsq_f32 v13, v13")
    a("s_nop 1")
    for i in range(8): a(f"v_mul_f32 v{AR+i}, v{AR+i}, v13")
    a(f"v_cvt_pk_bf16_f32 v32, v{AR}, v{AR+1}"); a(f"v_cvt_pk_bf16_f32 v33, v{AR+2}, v{AR+3}")
    a(f"v_cvt_pk_bf16_f32 v34, v{AI}, v{AI+1}"); a(f"v_cvt_pk_bf16_f32 v35, v{AI+2}, v{AI+3}")
    a("ds_write_b64 v15, v[32:33]"); a(f"ds_write_b64 v15, v[34:35] offset:{R_ZPL}")
    a("v_mul_u32_u24 v9, 384, v4"); a("v_lshrrev_b32 v10, 2, v3"); a("v_lshl_add_u32 v9, v10, 5, v9")
    a("v_and_b32 v10, 3, v3"); a("v_lshl_add_u32 v9, v10, 3, v9"); a(f"v_add_u32 v9, {R_LDS_Z}, v9")
    a("s_waitcnt lgkmcnt(0)")
    a("s_barrier")
    ZR, ZI = 64, 80
    for s in range(4):
        a(f"ds_read_b64_tr_b16 {vr(ZR+4*s,2)}, v9 offset:{1536*s}")
        a(f"ds_read_b64_tr_b16 {vr(ZR+4*s+2,2)}, v9 offset:{1536*s+128}")
        a(f"ds_read_b64_tr_b16 {vr(ZI+4*s,2)}, v9 offset:{R_ZPL+1536*s}")
        a(f"ds_read_b64_tr_b16 {vr(ZI+4*s+2,2)}, v9 offset:{R_ZPL+1536*s+128}")
    A0, A1, A2, A3 = 32, 36, 40, 44
    for i in range(16): a(f"v_mov_b32 v{A0+i}, 0")
    a("s_waitcnt vmcnt(0)")
    for s in range(4):
        a(f"s_waitcnt lgkmcnt({12 - 4*s})")
        a(f"v_mfma_f32_16x16x32_bf16 {vr(A0,4)}, {vr(ZR+4*s,4)}, {vr(CR+4*s,4)}, {vr(A0,4)}")
        a(f"v_mfma_f32_16x16x32_bf16 {vr(A1,4)}, {vr(ZI+4*s,4)}, {vr(CI+4*s,4)}, {vr(A1,4)}")
        a(f"v_mfma_f32_16x16x32_bf16 {vr(A2,4)}, {vr(ZI+4*s,4)}, {vr(CR+4*s,4)}, {vr(A2,4)}")
        a(f"v_mfma_f32_16x16x32_bf16 {vr(A3,4)}, {vr(ZR+4*s,4)}, {vr(CI+4*s,4)}, {vr(A3,4)}")
    a("v_lshlrev_b32 v9, 4, v6"); a("v_add_u32 v9, s46, v9"); a("v_lshlrev_b32 v9, 10, v9")
    a("v_lshl_add_u32 v9, v4, 4, v9"); a("s_lshl_b32 s52, s47, 6")
    a("s_nop 7")
    for i in range(4):
        a(f"v_sub_f32 v{A0+i}, v{A0+i}, v{A1+i}")
        a(f"v_add_f32 v{A2+i}, v{A2+i}, v{A3+i}")
    for i in range(4):
        a(f"v_mul_f32 v{A1+i}, v{A2+i}, v12")
        a(f"v_mul_f32 v{A3+i}, v{A2+i}, v11")
    for i in range(4):
        a(f"v_fma_f32 v{A1+i}, v{A0+i}, v11, -v{A1+i}")
        a(f"v_fma_f32 v{A3+i}, v{A0+i}, v12, v{A3+i}")
    for i in range(4):
        a(f"v_cvt_pk_bf16_f32 v{48+i}, v{A1+i}, v{A3+i}")
    a("buffer_store_dwordx4 v[48:51], v9, s[28:31], s52 offen")
    a(f"{done}:")
    return 160
```

```python
import sys
from gen_common import *
from gen_r import *; from gen_c import *; from gen_g1 import *; from gen_g2 import *
def build(extra_empty=0):
    hdr = open("cdna_kernels/" + NAME + ".s.ref").read().split("; Override launch")[0]
    ks = []
    def mk(name, fn):
        a = Asm(); a.uid = 100*len(ks); v = fn(a); a("s_endpgm"); ks.append((name, a.text(), v))
    mk("r0_kernel", lambda a: emit_R(a, 0)); mk("c0_kernel", lambda a: emit_C(a, 0)); mk("g1_kernel", emit_G1); mk("g20_kernel", lambda a: emit_G2(a, 0))
    mk("r1_kernel", lambda a: emit_R(a, 1)); mk("c1_kernel", lambda a: emit_C(a, 1)); mk("g21_kernel", lambda a: emit_G2(a, 1))
    L = []
    for l in range(2):
        L.append(f"; @launch kernel=r{l}_kernel grid=(256,1,1) block=(512,1,1) lds={R_LDS}")
        L.append(f"; @launch kernel=c{l}_kernel grid=(128,1,1) block=(512,1,1) lds={C_LDS}")
        L.append(f"; @launch kernel=g1_kernel grid=(224,1,1) block=(512,1,1) lds={G1_LDS}")
        L.append(f"; @launch kernel=g2{l}_kernel grid=(256,1,1) block=(512,1,1) lds={G2_LDS}")
    if extra_empty:
        mk("e_kernel", lambda a: 8)
        for i in range(extra_empty): L.append("; @launch kernel=e_kernel grid=(256,1,1) block=(512,1,1) lds=0")
    out = hdr + "\n".join(L) + "\n" + '.amdgcn_target "amdgcn-amd-amdhsa--gfx950"\n.text\n'
    for n, t, v in ks: out += kernel_header(n) + t
    out += '.section .rodata,"a"\n.p2align 6\n'
    for n, t, v in ks: out += ".p2align 6\n" + kernel_desc(n, v)
    return out
if __name__ == "__main__":
    e = int(sys.argv[2]) if len(sys.argv) > 2 else 0
    open(sys.argv[1] if len(sys.argv) > 1 else "cdna_kernels/" + NAME + ".s", "w").write(build(e))
```

```python
NAME = "interleave_layers__spectral_fnet__geglu_ffn__prompt"
MB = 1 << 20
WS_YP, WS_X1, WS_XH, WS_H, WS_X2 = 0, 2*MB, 4*MB, 6*MB, 14*MB
K_AX, K_SRE, K_SIM, K_HRE, K_HIM, K_WG, K_WU, K_WD, K_OUT, K_DBG, K_WS = 0, 8, 16, 24, 32, 48, 56, 64, 72, 80, 88

class Asm:
    def __init__(self):
        self.lines = []
        self.uid = 0
    def __call__(self, s):
        for l in s.strip("\n").split("\n"):
            self.lines.append("    " + l.strip() if not l.strip().endswith(":") else l.strip())
    def label(self, base):
        self.uid += 1
        return f"L_{base}_{self.uid}"
    def text(self):
        return "\n".join(self.lines) + "\n"

def vr(a, n=1):
    return f"v{a}" if n == 1 else f"v[{a}:{a+n-1}]"
def sr(a, n=1):
    return f"s{a}" if n == 1 else f"s[{a}:{a+n-1}]"

def load_ptr(a, sdst, koff):
    a(f"s_load_dwordx2 {sr(sdst,2)}, s[0:1], {koff}")

def make_srd(a, sd, sptr, nbytes, add=0):
    if add:
        a(f"s_add_u32 s{sd}, s{sptr}, {add}")
        a(f"s_addc_u32 s{sd+1}, s{sptr+1}, 0")
    else:
        a(f"s_mov_b32 s{sd}, s{sptr}")
        a(f"s_mov_b32 s{sd+1}, s{sptr+1}")
    a(f"s_mov_b32 s{sd+2}, {nbytes}")
    a(f"s_mov_b32 s{sd+3}, 0x00020000")

def kernel_header(name):
    return f".globl {name}\n.p2align 8\n.type {name},@function\n{name}:\n"

def kernel_desc(name, vgpr, sgpr=102):
    acc = (vgpr + 3)//4*4
    return (f".amdhsa_kernel {name}\n  .amdhsa_next_free_vgpr {vgpr}\n  .amdhsa_next_free_sgpr {sgpr}\n"
            f"  .amdhsa_accum_offset {acc}\n  .amdhsa_group_segment_fixed_size 0\n  .amdhsa_kernarg_size 96\n"
            f"  .amdhsa_user_sgpr_count 2\n  .amdhsa_user_sgpr_kernarg_segment_ptr 1\n"
            f"  .amdhsa_system_sgpr_workgroup_id_x 1\n.end_amdhsa_kernel\n")

PROF = {"on": False, "kid": 0}
WS_PROF = 16*MB
def stamp(a, i):
    if not PROF["on"]: return
    a("s_memrealtime s[66:67]"); a("s_memtime s[68:69]"); a("s_waitcnt lgkmcnt(0)")
    a(f"s_mov_b32 s{70+i}, s66"); a(f"s_mov_b32 s{80+i}, s68")
def prof_begin(a):
    if not PROF["on"]: return
    for i in range(20): a(f"s_mov_b32 s{70+i}, 0")
    stamp(a, 0)
def prof_end(a, n):
    if not PROF["on"]: return
    a("s_waitcnt vmcnt(0)")
    stamp(a, 9)
    lab = a.label("pe")
    a("v_cmp_gt_u32 vcc, 20, v0"); a("s_and_saveexec_b64 s[64:65], vcc"); a(f"s_cbranch_execz {lab}")
    a("s_load_dwordx2 s[92:93], s[0:1], 88"); a("s_waitcnt lgkmcnt(0)")
    a(f"s_add_u32 s92, s92, {WS_PROF + PROF['kid']*65536}"); a("s_addc_u32 s93, s93, 0")
    a("s_mov_b32 s94, 65536"); a("s_mov_b32 s95, 0x00020000")
    a("v_mov_b32 v1, 0")
    for i in range(20):
        a(f"v_cmp_eq_u32 vcc, {i}, v0"); a("s_nop 1"); a(f"v_mov_b32 v2, s{70+i}"); a("v_cndmask_b32 v1, v1, v2, vcc")
    a("s_lshl_b32 s64, s2, 7"); a("v_lshlrev_b32 v3, 2, v0"); a("v_add_u32 v3, s64, v3")
    a("buffer_store_dword v1, v3, s[92:95], 0 offen"); a("s_waitcnt vmcnt(0)")
    a(f"{lab}:")
    PROF["kid"] += 1
```

```python
from gen_common import *
R_LDS_F = 131072
R_LDS = 163840
def emit_R(a, layer):
    L = a.label
    done = L("r_done")
    load_ptr(a, 4, K_AX if layer == 0 else K_WS)
    load_ptr(a, 40, K_HRE); load_ptr(a, 42, K_HIM); load_ptr(a, 44, K_WS)
    a("s_cmp_ge_u32 s2, 256")
    a(f"s_cbranch_scc1 {done}")
    prof_begin(a)
    a("s_and_b32 s46, s2, 7"); a("s_lshl_b32 s46, s46, 1"); a("s_bfe_u32 s47, s2, 0x10003"); a("s_add_u32 s46, s46, s47")
    a("s_lshr_b32 s47, s2, 4")
    a("v_lshrrev_b32 v1, 6, v0"); a("v_and_b32 v2, 63, v0"); a("v_readfirstlane_b32 s48, v1")
    a("v_and_b32 v3, 15, v2"); a("v_lshrrev_b32 v4, 4, v2")
    XV = 8
    a("s_lshl_b32 s49, s48, 4")
    for i in range(4):
        a(f"v_add_u32 v5, {4*i}, v4"); a("v_xor_b32 v6, v5, v3"); a("v_add_u32 v5, s49, v5")
        if layer == 0:
            a("v_lshlrev_b32 v5, 14, v5")
        else:
            a("v_lshlrev_b32 v5, 10, v5")
        a(f"v_lshl_add_u32 v{XV+i}, v6, 4, v5")
    a(f"s_lshl_b32 s50, s46, {10 if layer == 0 else 17}")
    a("s_and_b32 s51, s48, 3"); a("s_lshl_b32 s51, s51, 2")
    a("s_lshl_b32 s52, s47, 4"); a("s_add_u32 s52, s52, s51")
    a("s_lshl_b32 s53, s48, 12"); a(f"s_add_u32 s53, s53, {R_LDS_F}")
    a("s_lshl_b32 s54, s48, 14")
    FV = 12
    for q in range(4):
        a(f"s_add_u32 s55, s51, {q}"); a("v_xor_b32 v5, s55, v2"); a(f"v_lshlrev_b32 v{FV+q}, 4, v5")
    a("s_waitcnt lgkmcnt(0)")
    make_srd(a, 8, 4, 2*MB, add=(0 if layer == 0 else WS_X2))
    a("s_cmp_ge_u32 s48, 4"); a("s_cselect_b32 s12, s42, s40"); a("s_cselect_b32 s13, s43, s41")
    a("s_mov_b32 s14, 0x80000"); a("s_mov_b32 s15, 0x00020000")
    for q in range(4):
        a(f"s_add_u32 s55, s52, {q}")
        if q == 0:
            a("s_cmp_eq_u32 s55, 0"); a("s_cselect_b32 s55, 256, s55")
        a("s_lshl_b32 s55, s55, 10")
        a(f"s_add_u32 m0, s53, {q*1024}")
        a("s_nop 0")
        a(f"buffer_load_dwordx4 v{FV+q}, s[12:15], s55 offen lds")
    for kc in range(4):
        a(f"s_add_u32 s55, s50, {kc*256}")
        for i in range(4):
            a(f"s_add_u32 m0, s54, {kc*4096 + i*1024}")
            a("s_nop 0")
            a(f"buffer_load_dwordx4 v{XV+i}, s[8:11], s55 offen lds")
    stamp(a, 1)
    make_srd(a, 28, 44, 2*MB, add=WS_YP)
    CR, CI = 64, 80
    a("v_add_u32 v6, s49, v3"); a("v_cvt_f32_u32 v5, v6"); a("v_mul_f32 v5, 0x3c000000, v5")
    a("v_lshlrev_b32 v7, 3, v4"); a("v_cvt_f32_u32 v7, v7")
    for s in range(4):
        for jp in range(4):
            t = 48 + 8*(jp % 2)
            a(f"v_add_f32 v{t}, {float(32*s + 2*jp)}, v7" if (32*s+2*jp) not in (0,) else f"v_mov_b32 v{t}, v7")
            a(f"v_add_f32 v{t+1}, 1.0, v{t}")
            a(f"v_mul_f32 v{t}, v{t}, v5"); a(f"v_mul_f32 v{t+1}, v{t+1}, v5")
            a(f"v_fract_f32 v{t}, v{t}"); a(f"v_fract_f32 v{t+1}, v{t+1}")
            a(f"v_cos_f32 v{t+2}, v{t}"); a(f"v_cos_f32 v{t+3}, v{t+1}"); a(f"v_sin_f32 v{t+4}, v{t}"); a(f"v_sin_f32 v{t+5}, v{t+1}")
            a("s_nop 0")
            a(f"v_cvt_pk_bf16_f32 v{CR+4*s+jp}, v{t+2}, v{t+3}"); a(f"v_cvt_pk_bf16_f32 v{CI+4*s+jp}, v{t+4}, v{t+5}")
    TW = 96
    a("v_lshlrev_b32 v5, 2, v4"); a("v_add_u32 v5, s49, v5")
    for i in range(4):
        a(f"v_add_u32 v7, {i}, v5"); a("v_mul_u32_u24 v7, s46, v7"); a("v_cvt_f32_u32 v7, v7"); a("v_mul_f32 v7, 0xba000000, v7")
        a(f"v_cos_f32 v{TW+i}, v7"); a(f"v_sin_f32 v{TW+4+i}, v7")
    a("v_lshlrev_b32 v7, 14, v5"); a("v_lshl_add_u32 v104, v3, 2, v7")
    a("s_lshl_b32 s56, s46, 10"); a("s_lshl_b32 s57, s47, 6"); a("s_add_u32 s56, s56, s57")
    XA, FA = 16, 20
    for sm in range(4):
        a(f"v_add_u32 v5, {4*sm}, v4"); a("v_xor_b32 v5, v5, v3"); a("v_lshlrev_b32 v5, 4, v5")
        a(f"v_lshl_add_u32 v{XA+sm}, v3, 8, v5"); a(f"v_add_u32 v{XA+sm}, s54, v{XA+sm}")
        a(f"v_lshl_add_u32 v{FA+sm}, v3, 10, v5"); a(f"v_add_u32 v{FA+sm}, {R_LDS_F}, v{FA+sm}")
    ONE = 24
    for i in range(4): a(f"v_mov_b32 v{ONE+i}, 0x3f803f80")
    AR, AI, AS = 28, 32, 36
    for i in range(12): a(f"v_mov_b32 v{AR+i}, 0")
    a("v_mov_b32 v14, 0"); a("v_mov_b32 v15, 0")
    a("v_lshrrev_b32 v5, 3, v3"); a("v_lshlrev_b32 v5, 7, v5"); a("v_lshl_add_u32 v5, v3, 5, v5"); a("v_lshl_add_u32 v5, v4, 3, v5")
    a("v_add_u32 v105, s54, v5")
    a("v_lshrrev_b32 v5, 1, v4"); a("v_lshlrev_b32 v5, 14, v5"); a("v_and_b32 v6, 1, v4"); a("v_mul_u32_u24 v6, 384, v6"); a("v_add_u32 v5, v5, v6")
    a("v_lshrrev_b32 v6, 2, v3"); a("v_lshl_add_u32 v5, v6, 5, v5"); a("v_and_b32 v6, 3, v3"); a("v_lshl_add_u32 v106, v6, 3, v5")
    a("v_add_u32 v107, 65536, v106")
    a("s_waitcnt vmcnt(12)")
    a("s_barrier")
    stamp(a, 2)
    FB = 108
    def fread(s):
        b = FB + 12*(s % 4); kc, sm = divmod(s, 4)
        a(f"ds_read_b128 {vr(b+8,4)}, v{XA+sm} offset:{4096*kc}")
        a(f"ds_read_b128 {vr(b,4)}, v{FA+sm} offset:{256*kc}")
        a(f"ds_read_b128 {vr(b+4,4)}, v{FA+sm} offset:{16384 + 256*kc}")
    for kc in range(4):
        if kc > 0: a(f"s_waitcnt vmcnt({12 - 4*kc})")
        for sm in range(4): fread(4*kc + sm)
        for sm in range(4):
            s = 4*kc + sm
            a(f"s_waitcnt lgkmcnt({9 - 3*sm})")
            b = FB + 12*(s % 4); x = b + 8
            a(f"v_mfma_f32_16x16x32_bf16 {vr(AR,4)}, {vr(b,4)}, {vr(x,4)}, {vr(AR,4)}")
            a(f"v_dot2_f32_bf16 v14, v{x}, v{x}, v14"); a(f"v_dot2_f32_bf16 v15, v{x+1}, v{x+1}, v15")
            a(f"v_mfma_f32_16x16x32_bf16 {vr(AI,4)}, {vr(b+4,4)}, {vr(x,4)}, {vr(AI,4)}")
            a(f"v_dot2_f32_bf16 v14, v{x+2}, v{x+2}, v14"); a(f"v_dot2_f32_bf16 v15, v{x+3}, v{x+3}, v15")
            a(f"v_mfma_f32_16x16x32_bf16 {vr(AS,4)}, {vr(ONE,4)}, {vr(x,4)}, {vr(AS,4)}")
    stamp(a, 3)
    a("s_nop 3")
    a("v_add_f32 v14, v14, v15"); a("s_nop 1"); a("v_mov_b32 v15, v14"); a("s_nop 1")
    a("v_permlane32_swap_b32 v14, v15"); a("s_nop 1"); a("v_add_f32 v14, v14, v15"); a("s_nop 1"); a("v_mov_b32 v15, v14"); a("s_nop 1")
    a("v_permlane16_swap_b32 v14, v15"); a("s_nop 1"); a("v_add_f32 v14, v14, v15")
    a(f"v_mul_f32 v15, 0x3b000000, v{AS}")
    a("v_mul_f32 v14, 0x3b000000, v14")
    a("v_fma_f32 v14, -v15, v15, v14")
    a("v_add_f32 v14, 0x3727c5ac, v14")
    a("v_rsq_f32 v14, v14")
    a("s_nop 0")
    for i in range(8): a(f"v_mul_f32 v{AR+i}, v{AR+i}, v14")
    a(f"v_cvt_pk_bf16_f32 v40, v{AR}, v{AR+1}"); a(f"v_cvt_pk_bf16_f32 v41, v{AR+2}, v{AR+3}")
    a(f"v_cvt_pk_bf16_f32 v42, v{AI}, v{AI+1}"); a(f"v_cvt_pk_bf16_f32 v43, v{AI+2}, v{AI+3}")
    a("ds_write_b64 v105, v[40:41]"); a("ds_write_b64 v105, v[42:43] offset:1024")
    A0, A1, A2, A3 = 28, 32, 36, 44
    for r in (A0, A1, A2, A3):
        for i in range(4): a(f"v_mov_b32 v{r+i}, 0")
    a("s_waitcnt lgkmcnt(0)")
    a("s_barrier")
    stamp(a, 4)
    ZR, ZI = 108, 124
    for s in range(4):
        ad = "v106" if s < 2 else "v107"; o = (s % 2)*32768
        a(f"ds_read_b64_tr_b16 {vr(ZR+4*s,2)}, {ad} offset:{o}")
        a(f"ds_read_b64_tr_b16 {vr(ZR+4*s+2,2)}, {ad} offset:{o+128}")
        a(f"ds_read_b64_tr_b16 {vr(ZI+4*s,2)}, {ad} offset:{o+1024}")
        a(f"ds_read_b64_tr_b16 {vr(ZI+4*s+2,2)}, {ad} offset:{o+1024+128}")
    for s in range(4):
        a(f"s_waitcnt lgkmcnt({12 - 4*s})")
        a(f"v_mfma_f32_16x16x32_bf16 {vr(A0,4)}, {vr(CR+4*s,4)}, {vr(ZR+4*s,4)}, {vr(A0,4)}")
        a(f"v_mfma_f32_16x16x32_bf16 {vr(A1,4)}, {vr(CI+4*s,4)}, {vr(ZI+4*s,4)}, {vr(A1,4)}")
        a(f"v_mfma_f32_16x16x32_bf16 {vr(A2,4)}, {vr(CR+4*s,4)}, {vr(ZI+4*s,4)}, {vr(A2,4)}")
        a(f"v_mfma_f32_16x16x32_bf16 {vr(A3,4)}, {vr(CI+4*s,4)}, {vr(ZR+4*s,4)}, {vr(A3,4)}")
    stamp(a, 5)
    a("s_add_u32 s57, s56, 16384"); a("s_add_u32 s58, s56, 32768"); a("s_add_u32 s59, s56, 49152")
    a("s_nop 7")
    for i in range(4):
        a(f"v_add_f32 v{A0+i}, v{A0+i}, v{A1+i}")
        a(f"v_sub_f32 v{A2+i}, v{A2+i}, v{A3+i}")
    for i in range(4):
        a(f"v_mul_f32 v{A1+i}, v{A2+i}, v{TW+4+i}")
        a(f"v_mul_f32 v{A3+i}, v{A2+i}, v{TW+i}")
    for i in range(4):
        a(f"v_fma_f32 v{A1+i}, v{A0+i}, v{TW+i}, -v{A1+i}")
        a(f"v_fma_f32 v{A3+i}, v{A0+i}, v{TW+4+i}, v{A3+i}")
    for i in range(4):
        a(f"v_cvt_pk_bf16_f32 v{48+i}, v{A1+i}, v{A3+i}")
    for i in range(4):
        a(f"buffer_store_dword v{48+i}, v104, s[28:31], s{56+i} offen")
    prof_end(a, 10)
    a(f"{done}:")
    return 160
```

```python
import sys
from gen_common import *
from gen_r import *; from gen_c import *; from gen_g1 import *; from gen_g2 import *
import os
SC1 = int(os.environ.get('SC1', '1'))
def build(extra_empty=0):
    hdr = open("cdna_kernels/" + NAME + ".s.ref").read().split("; Override launch")[0]
    ks = []
    def mk(name, fn):
        a = Asm(); a.uid = 100*len(ks); v = fn(a); a("s_endpgm"); ks.append((name, a.text(), v))
    mk("r0_kernel", lambda a: emit_R(a, 0)); mk("c0_kernel", lambda a: emit_C(a, 0)); mk("g1_kernel", emit_G1); mk("g20_kernel", lambda a: emit_G2(a, 0))
    mk("r1_kernel", lambda a: emit_R(a, 1)); mk("c1_kernel", lambda a: emit_C(a, 1)); mk("g21_kernel", lambda a: emit_G2(a, 1))
    L = []
    for l in range(2):
        L.append(f"; @launch kernel=r{l}_kernel grid=(256,1,1) block=(512,1,1) lds={R_LDS}")
        L.append(f"; @launch kernel=c{l}_kernel grid=({256 if (l == 0 and PREFETCH) else 128},1,1) block=(512,1,1) lds={C_LDS}")
        L.append(f"; @launch kernel=g1_kernel grid=(224,1,1) block=(512,1,1) lds={G1_LDS}")
        L.append(f"; @launch kernel=g2{l}_kernel grid=(256,1,1) block=(512,1,1) lds={G2_LDS}")
    if extra_empty:
        mk("e_kernel", lambda a: 8)
        for i in range(extra_empty): L.append("; @launch kernel=e_kernel grid=(256,1,1) block=(512,1,1) lds=0")
    out = hdr + "\n".join(L) + "\n" + '.amdgcn_target "amdgcn-amd-amdhsa--gfx950"\n.text\n'
    for n, t, v in ks: out += kernel_header(n) + t
    out += '.section .rodata,"a"\n.p2align 6\n'
    for n, t, v in ks: out += ".p2align 6\n" + kernel_desc(n, v)
    out = "\n".join((l + " sc1" if (l.strip().startswith("buffer_store") and SC1) else l) for l in out.split("\n"))
    return out
if __name__ == "__main__":
    e = int(sys.argv[2]) if len(sys.argv) > 2 else 0
    if len(sys.argv) > 3 and sys.argv[3] == "prof": PROF["on"] = True
    open(sys.argv[1] if len(sys.argv) > 1 else "cdna_kernels/" + NAME + ".s", "w").write(build(e))
```

```python
NAME = "interleave_layers__spectral_fnet__geglu_ffn__prompt"
MB = 1 << 20
WS_YP, WS_X1, WS_XH, WS_H, WS_X2 = 0, 2*MB, 4*MB, 6*MB, 14*MB
K_AX, K_SRE, K_SIM, K_HRE, K_HIM, K_WG, K_WU, K_WD, K_OUT, K_DBG, K_WS = 0, 8, 16, 24, 32, 48, 56, 64, 72, 80, 88

class Asm:
    def __init__(self):
        self.lines = []
        self.uid = 0
    def __call__(self, s):
        for l in s.strip("\n").split("\n"):
            self.lines.append("    " + l.strip() if not l.strip().endswith(":") else l.strip())
    def label(self, base):
        self.uid += 1
        return f"L_{base}_{self.uid}"
    def text(self):
        return "\n".join(self.lines) + "\n"

def vr(a, n=1):
    return f"v{a}" if n == 1 else f"v[{a}:{a+n-1}]"
def sr(a, n=1):
    return f"s{a}" if n == 1 else f"s[{a}:{a+n-1}]"

def load_ptr(a, sdst, koff):
    a(f"s_load_dwordx2 {sr(sdst,2)}, s[0:1], {koff}")

def make_srd(a, sd, sptr, nbytes, add=0):
    if add:
        a(f"s_add_u32 s{sd}, s{sptr}, {add}")
        a(f"s_addc_u32 s{sd+1}, s{sptr+1}, 0")
    else:
        a(f"s_mov_b32 s{sd}, s{sptr}")
        a(f"s_mov_b32 s{sd+1}, s{sptr+1}")
    a(f"s_mov_b32 s{sd+2}, {nbytes}")
    a(f"s_mov_b32 s{sd+3}, 0x00020000")

def kernel_header(name):
    return f".globl {name}\n.p2align 8\n.type {name},@function\n{name}:\n"

def kernel_desc(name, vgpr, sgpr=102):
    acc = (vgpr + 3)//4*4
    return (f".amdhsa_kernel {name}\n  .amdhsa_next_free_vgpr {vgpr}\n  .amdhsa_next_free_sgpr {sgpr}\n"
            f"  .amdhsa_accum_offset {acc}\n  .amdhsa_group_segment_fixed_size 0\n  .amdhsa_kernarg_size 96\n"
            f"  .amdhsa_user_sgpr_count 2\n  .amdhsa_user_sgpr_kernarg_segment_ptr 1\n"
            f"  .amdhsa_system_sgpr_workgroup_id_x 1\n.end_amdhsa_kernel\n")

PROF = {"on": False, "kid": 0}
WS_PROF = 16*MB
WS_WD = 18*MB
def stamp(a, i):
    if not PROF["on"]: return
    a("s_memrealtime s[66:67]"); a("s_memtime s[68:69]"); a("s_waitcnt lgkmcnt(0)")
    a(f"s_mov_b32 s{70+i}, s66"); a(f"s_mov_b32 s{80+i}, s68")
def prof_begin(a):
    if not PROF["on"]: return
    for i in range(20): a(f"s_mov_b32 s{70+i}, 0")
    stamp(a, 0)
def prof_end(a, n):
    if not PROF["on"]: return
    a("s_waitcnt vmcnt(0)")
    stamp(a, 9)
    lab = a.label("pe")
    a("v_cmp_gt_u32 vcc, 20, v0"); a("s_and_saveexec_b64 s[64:65], vcc"); a(f"s_cbranch_execz {lab}")
    a("s_load_dwordx2 s[92:93], s[0:1], 88"); a("s_waitcnt lgkmcnt(0)")
    a(f"s_add_u32 s92, s92, {WS_PROF + PROF['kid']*65536}"); a("s_addc_u32 s93, s93, 0")
    a("s_mov_b32 s94, 65536"); a("s_mov_b32 s95, 0x00020000")
    a("v_mov_b32 v1, 0")
    for i in range(20):
        a(f"v_cmp_eq_u32 vcc, {i}, v0"); a("s_nop 1"); a(f"v_mov_b32 v2, s{70+i}"); a("v_cndmask_b32 v1, v1, v2, vcc")
    a("s_lshl_b32 s64, s2, 7"); a("v_lshlrev_b32 v3, 2, v0"); a("v_add_u32 v3, s64, v3")
    a("buffer_store_dword v1, v3, s[92:95], 0 offen"); a("s_waitcnt vmcnt(0)")
    a(f"{lab}:")
    PROF["kid"] += 1


def interleave(a, lines, groups, start=0.0, end=1.0):
    n = len(lines); g = len(groups)
    pos = [int(n*(start + (end - start)*(i/ max(g,1)))) for i in range(g)]
    gi = 0
    for i, l in enumerate(lines):
        t = l.strip()
        if not (t.startswith("s_addc") or t.startswith("s_cselect") or t.startswith("s_cbranch") or t.startswith("v_cndmask") or t.startswith("s_and_saveexec")):
            while gi < g and pos[gi] <= i:
                for s in groups[gi]: a(s)
                gi += 1
        a.lines.append(l)
    while gi < g:
        for s in groups[gi]: a(s)
        gi += 1
```

```python
from gen_common import *
import os
RFRAC = float(os.environ.get('RFRAC', '0.7'))
R_LDS_F = 131072
R_LDS = 163840
def emit_R(a, layer):
    L = a.label
    done = L("r_done")
    load_ptr(a, 4, K_AX if layer == 0 else K_WS)
    load_ptr(a, 40, K_HRE); load_ptr(a, 42, K_HIM); load_ptr(a, 44, K_WS)
    a("s_cmp_ge_u32 s2, 256")
    a(f"s_cbranch_scc1 {done}")
    prof_begin(a)
    a("s_and_b32 s46, s2, 7"); a("s_lshl_b32 s46, s46, 1"); a("s_bfe_u32 s47, s2, 0x10003"); a("s_add_u32 s46, s46, s47")
    a("s_lshr_b32 s47, s2, 4")
    a("v_lshrrev_b32 v1, 6, v0"); a("v_and_b32 v2, 63, v0"); a("v_readfirstlane_b32 s48, v1")
    a("v_and_b32 v3, 15, v2"); a("v_lshrrev_b32 v4, 4, v2")
    XV = 8
    a("s_lshl_b32 s49, s48, 4")
    for i in range(4):
        a(f"v_add_u32 v5, {4*i}, v4"); a("v_xor_b32 v6, v5, v3"); a("v_add_u32 v5, s49, v5")
        if layer == 0:
            a("v_lshlrev_b32 v5, 14, v5")
        else:
            a("v_lshlrev_b32 v5, 10, v5")
        a(f"v_lshl_add_u32 v{XV+i}, v6, 4, v5")
    a(f"s_lshl_b32 s50, s46, {10 if layer == 0 else 17}")
    a("s_and_b32 s51, s48, 3"); a("s_lshl_b32 s51, s51, 2")
    a("s_lshl_b32 s52, s47, 4"); a("s_add_u32 s52, s52, s51")
    a("s_lshl_b32 s53, s48, 12"); a(f"s_add_u32 s53, s53, {R_LDS_F}")
    a("s_lshl_b32 s54, s48, 14")
    FV = 12
    for q in range(4):
        a(f"s_add_u32 s55, s51, {q}"); a("v_xor_b32 v5, s55, v2"); a(f"v_lshlrev_b32 v{FV+q}, 4, v5")
    a("s_waitcnt lgkmcnt(0)")
    make_srd(a, 8, 4, 2*MB, add=(0 if layer == 0 else WS_X2))
    a("s_cmp_ge_u32 s48, 4"); a("s_cselect_b32 s12, s42, s40"); a("s_cselect_b32 s13, s43, s41")
    a("s_mov_b32 s14, 0x80000"); a("s_mov_b32 s15, 0x00020000")
    for q in range(4):
        a(f"s_add_u32 s55, s52, {q}")
        if q == 0:
            a("s_cmp_eq_u32 s55, 0"); a("s_cselect_b32 s55, 256, s55")
        a("s_lshl_b32 s55, s55, 10")
        a(f"s_add_u32 m0, s53, {q*1024}")
        a("s_nop 0")
        a(f"buffer_load_dwordx4 v{FV+q}, s[12:15], s55 offen lds")
    xg = [[f"s_add_u32 m0, s54, {kc*4096 + i*1024}", f"s_add_u32 s55, s50, {kc*256}", f"buffer_load_dwordx4 v{XV+i}, s[8:11], s55 offen lds"] for kc in range(4) for i in range(4)]
    for it in xg[:4]:
        for s in it: a(s)
    stamp(a, 1)
    a_main = a; a = Asm()
    make_srd(a, 28, 44, 2*MB, add=WS_YP)
    CR, CI = 64, 80
    a("v_add_u32 v6, s49, v3"); a("v_cvt_f32_u32 v5, v6"); a("v_mul_f32 v5, 0x3c000000, v5")
    a("v_lshlrev_b32 v7, 3, v4"); a("v_cvt_f32_u32 v7, v7")
    for s in range(4):
        for jp in range(4):
            t = 48 + 8*(jp % 2)
            a(f"v_add_f32 v{t}, {float(32*s + 2*jp)}, v7" if (32*s+2*jp) not in (0,) else f"v_mov_b32 v{t}, v7")
            a(f"v_add_f32 v{t+1}, 1.0, v{t}")
            a(f"v_mul_f32 v{t}, v{t}, v5"); a(f"v_mul_f32 v{t+1}, v{t+1}, v5")
            a(f"v_fract_f32 v{t}, v{t}"); a(f"v_fract_f32 v{t+1}, v{t+1}")
            a(f"v_cos_f32 v{t+2}, v{t}"); a(f"v_cos_f32 v{t+3}, v{t+1}"); a(f"v_sin_f32 v{t+4}, v{t}"); a(f"v_sin_f32 v{t+5}, v{t+1}")
            a("s_nop 0")
            a(f"v_cvt_pk_bf16_f32 v{CR+4*s+jp}, v{t+2}, v{t+3}"); a(f"v_cvt_pk_bf16_f32 v{CI+4*s+jp}, v{t+4}, v{t+5}")
    TW = 96
    a("v_lshlrev_b32 v5, 2, v4"); a("v_add_u32 v5, s49, v5")
    for i in range(4):
        a(f"v_add_u32 v7, {i}, v5"); a("v_mul_u32_u24 v7, s46, v7"); a("v_cvt_f32_u32 v7, v7"); a("v_mul_f32 v7, 0xba000000, v7")
        a(f"v_cos_f32 v{TW+i}, v7"); a(f"v_sin_f32 v{TW+4+i}, v7")
    a("v_lshlrev_b32 v7, 14, v5"); a("v_lshl_add_u32 v104, v3, 2, v7")
    a("s_lshl_b32 s56, s46, 10"); a("s_lshl_b32 s57, s47, 6"); a("s_add_u32 s56, s56, s57")
    XA, FA = 16, 20
    for sm in range(4):
        a(f"v_add_u32 v5, {4*sm}, v4"); a("v_xor_b32 v5, v5, v3"); a("v_lshlrev_b32 v5, 4, v5")
        a(f"v_lshl_add_u32 v{XA+sm}, v3, 8, v5"); a(f"v_add_u32 v{XA+sm}, s54, v{XA+sm}")
        a(f"v_lshl_add_u32 v{FA+sm}, v3, 10, v5"); a(f"v_add_u32 v{FA+sm}, {R_LDS_F}, v{FA+sm}")
    ONE = 24
    for i in range(4): a(f"v_mov_b32 v{ONE+i}, 0x3f803f80")
    AR, AI, AS = 28, 32, 36
    a("v_mov_b32 v14, 0"); a("v_mov_b32 v15, 0")
    a("v_lshrrev_b32 v5, 3, v3"); a("v_lshlrev_b32 v5, 7, v5"); a("v_lshl_add_u32 v5, v3, 5, v5"); a("v_lshl_add_u32 v5, v4, 3, v5")
    a("v_add_u32 v105, s54, v5")
    a("v_lshrrev_b32 v5, 1, v4"); a("v_lshlrev_b32 v5, 14, v5"); a("v_and_b32 v6, 1, v4"); a("v_mul_u32_u24 v6, 384, v6"); a("v_add_u32 v5, v5, v6")
    a("v_lshrrev_b32 v6, 2, v3"); a("v_lshl_add_u32 v5, v6, 5, v5"); a("v_and_b32 v6, 3, v3"); a("v_lshl_add_u32 v106, v6, 3, v5")
    a("v_add_u32 v107, 65536, v106")
    setup = a.lines; a = a_main
    interleave(a, setup, xg[4:], 0.0, RFRAC)
    a("s_waitcnt vmcnt(12)")
    a("s_barrier")
    stamp(a, 2)
    FB = 108
    def fread(s):
        b = FB + 12*(s % 4); kc, sm = divmod(s, 4)
        a(f"ds_read_b128 {vr(b+8,4)}, v{XA+sm} offset:{4096*kc}")
        a(f"ds_read_b128 {vr(b,4)}, v{FA+sm} offset:{256*kc}")
        a(f"ds_read_b128 {vr(b+4,4)}, v{FA+sm} offset:{16384 + 256*kc}")
    for kc in range(4):
        if kc > 0: a(f"s_waitcnt vmcnt({12 - 4*kc})")
        for sm in range(4): fread(4*kc + sm)
        for sm in range(4):
            s = 4*kc + sm
            a(f"s_waitcnt lgkmcnt({9 - 3*sm})")
            b = FB + 12*(s % 4); x = b + 8
            a(f"v_mfma_f32_16x16x32_bf16 {vr(AR,4)}, {vr(b,4)}, {vr(x,4)}, {'0' if s == 0 else vr(AR,4)}")
            a(f"v_dot2_f32_bf16 v14, v{x}, v{x}, v14"); a(f"v_dot2_f32_bf16 v15, v{x+1}, v{x+1}, v15")
            a(f"v_mfma_f32_16x16x32_bf16 {vr(AI,4)}, {vr(b+4,4)}, {vr(x,4)}, {'0' if s == 0 else vr(AI,4)}")
            a(f"v_dot2_f32_bf16 v14, v{x+2}, v{x+2}, v14"); a(f"v_dot2_f32_bf16 v15, v{x+3}, v{x+3}, v15")
            a(f"v_mfma_f32_16x16x32_bf16 {vr(AS,4)}, {vr(ONE,4)}, {vr(x,4)}, {'0' if s == 0 else vr(AS,4)}")
    stamp(a, 3)
    a("s_nop 3")
    a("v_add_f32 v14, v14, v15"); a("s_nop 1"); a("v_mov_b32 v15, v14"); a("s_nop 1")
    a("v_permlane32_swap_b32 v14, v15"); a("s_nop 1"); a("v_add_f32 v14, v14, v15"); a("s_nop 1"); a("v_mov_b32 v15, v14"); a("s_nop 1")
    a("v_permlane16_swap_b32 v14, v15"); a("s_nop 1"); a("v_add_f32 v14, v14, v15")
    a(f"v_mul_f32 v15, 0x3b000000, v{AS}")
    a("v_mul_f32 v14, 0x3b000000, v14")
    a("v_fma_f32 v14, -v15, v15, v14")
    a("v_add_f32 v14, 0x3727c5ac, v14")
    a("v_rsq_f32 v14, v14")
    a("s_nop 0")
    for i in range(8): a(f"v_mul_f32 v{AR+i}, v{AR+i}, v14")
    a(f"v_cvt_pk_bf16_f32 v40, v{AR}, v{AR+1}"); a(f"v_cvt_pk_bf16_f32 v41, v{AR+2}, v{AR+3}")
    a(f"v_cvt_pk_bf16_f32 v42, v{AI}, v{AI+1}"); a(f"v_cvt_pk_bf16_f32 v43, v{AI+2}, v{AI+3}")
    a("ds_write_b64 v105, v[40:41]"); a("ds_write_b64 v105, v[42:43] offset:1024")
    A0, A1, A2, A3 = 28, 32, 36, 44
    a("s_waitcnt lgkmcnt(0)")
    a("s_barrier")
    stamp(a, 4)
    ZR, ZI = 108, 124
    for s in range(4):
        ad = "v106" if s < 2 else "v107"; o = (s % 2)*32768
        a(f"ds_read_b64_tr_b16 {vr(ZR+4*s,2)}, {ad} offset:{o}")
        a(f"ds_read_b64_tr_b16 {vr(ZR+4*s+2,2)}, {ad} offset:{o+128}")
        a(f"ds_read_b64_tr_b16 {vr(ZI+4*s,2)}, {ad} offset:{o+1024}")
        a(f"ds_read_b64_tr_b16 {vr(ZI+4*s+2,2)}, {ad} offset:{o+1024+128}")
    for s in range(4):
        a(f"s_waitcnt lgkmcnt({12 - 4*s})")
        a(f"v_mfma_f32_16x16x32_bf16 {vr(A0,4)}, {vr(CR+4*s,4)}, {vr(ZR+4*s,4)}, {'0' if s == 0 else vr(A0,4)}")
        a(f"v_mfma_f32_16x16x32_bf16 {vr(A1,4)}, {vr(CI+4*s,4)}, {vr(ZI+4*s,4)}, {'0' if s == 0 else vr(A1,4)}")
        a(f"v_mfma_f32_16x16x32_bf16 {vr(A2,4)}, {vr(CR+4*s,4)}, {vr(ZI+4*s,4)}, {'0' if s == 0 else vr(A2,4)}")
        a(f"v_mfma_f32_16x16x32_bf16 {vr(A3,4)}, {vr(CI+4*s,4)}, {vr(ZR+4*s,4)}, {'0' if s == 0 else vr(A3,4)}")
    stamp(a, 5)
    a("s_add_u32 s57, s56, 16384"); a("s_add_u32 s58, s56, 32768"); a("s_add_u32 s59, s56, 49152")
    a("s_nop 7")
    for i in range(4):
        a(f"v_add_f32 v{A0+i}, v{A0+i}, v{A1+i}")
        a(f"v_sub_f32 v{A2+i}, v{A2+i}, v{A3+i}")
    for i in range(4):
        a(f"v_mul_f32 v{A1+i}, v{A2+i}, v{TW+4+i}")
        a(f"v_mul_f32 v{A3+i}, v{A2+i}, v{TW+i}")
    for i in range(4):
        a(f"v_fma_f32 v{A1+i}, v{A0+i}, v{TW+i}, -v{A1+i}")
        a(f"v_fma_f32 v{A3+i}, v{A0+i}, v{TW+4+i}, v{A3+i}")
    for i in range(4):
        a(f"v_cvt_pk_bf16_f32 v{48+i}, v{A1+i}, v{A3+i}")
    for i in range(4):
        a(f"buffer_store_dword v{48+i}, v104, s[28:31], s{56+i} offen")
    prof_end(a, 10)
    a(f"{done}:")
    return 160
```

```python
from gen_common import *
import os
RFRAC = float(os.environ.get('RFRAC', '0.7'))
ROT = int(os.environ.get('ROT', '1'))
R_LDS_F = 131072
R_LDS = 163840
def emit_R(a, layer):
    L = a.label
    done = L("r_done")
    load_ptr(a, 4, K_AX if layer == 0 else K_WS)
    load_ptr(a, 40, K_HRE); load_ptr(a, 42, K_HIM); load_ptr(a, 44, K_WS)
    a("s_cmp_ge_u32 s2, 256")
    a(f"s_cbranch_scc1 {done}")
    prof_begin(a)
    a("s_and_b32 s46, s2, 7"); a("s_lshl_b32 s46, s46, 1"); a("s_bfe_u32 s47, s2, 0x10003"); a("s_add_u32 s46, s46, s47")
    a("s_lshr_b32 s47, s2, 4")
    a("v_lshrrev_b32 v1, 6, v0"); a("v_and_b32 v2, 63, v0"); a("v_readfirstlane_b32 s48, v1")
    a("v_and_b32 v3, 15, v2"); a("v_lshrrev_b32 v4, 4, v2")
    XV = 8
    a("s_lshl_b32 s49, s48, 4")
    for i in range(4):
        a(f"v_add_u32 v5, {4*i}, v4"); a("v_xor_b32 v6, v5, v3"); a("v_add_u32 v5, s49, v5")
        if layer == 0:
            a("v_lshlrev_b32 v5, 14, v5")
        else:
            a("v_lshlrev_b32 v5, 10, v5")
        a(f"v_lshl_add_u32 v{XV+i}, v6, 4, v5")
    a(f"s_lshl_b32 s50, s46, {10 if layer == 0 else 17}")
    a("s_and_b32 s51, s48, 3"); a("s_lshl_b32 s51, s51, 2")
    a("s_lshl_b32 s52, s47, 4"); a("s_add_u32 s52, s52, s51")
    a("s_lshl_b32 s53, s48, 12"); a(f"s_add_u32 s53, s53, {R_LDS_F}")
    a("s_lshl_b32 s54, s48, 14")
    FV = 12
    for q in range(4):
        a(f"s_add_u32 s55, s51, {q}"); a("v_xor_b32 v5, s55, v2"); a(f"v_lshlrev_b32 v{FV+q}, 4, v5")
    a("s_waitcnt lgkmcnt(0)")
    make_srd(a, 8, 4, 2*MB, add=(0 if layer == 0 else WS_X2))
    a("s_cmp_ge_u32 s48, 4"); a("s_cselect_b32 s12, s42, s40"); a("s_cselect_b32 s13, s43, s41")
    a("s_mov_b32 s14, 0x80000"); a("s_mov_b32 s15, 0x00020000")
    for q in range(4):
        a(f"s_add_u32 s55, s52, {q}")
        if q == 0:
            a("s_cmp_eq_u32 s55, 0"); a("s_cselect_b32 s55, 256, s55")
        a("s_lshl_b32 s55, s55, 10")
        a(f"s_add_u32 m0, s53, {q*1024}")
        a("s_nop 0")
        a(f"buffer_load_dwordx4 v{FV+q}, s[12:15], s55 offen lds")
    if ROT:
        a("s_add_u32 s60, s48, s47"); a("s_and_b32 s59, s60, 3")
        for kc in range(4):
            a(f"s_add_u32 s{60+kc}, s59, {kc}"); a(f"s_and_b32 s{60+kc}, s{60+kc}, 3"); a(f"s_lshl_b32 s{60+kc}, s{60+kc}, 8")
        for kc in range(3): a(f"s_sub_u32 s{33+kc}, s{61+kc}, s{60+kc}")
        a("s_mov_b32 s36, s60")
        for kc in range(4): a(f"s_add_u32 s{60+kc}, s{60+kc}, s50")
        xg = [[f"s_add_u32 m0, s54, {kc*4096 + i*1024}", "s_nop 0", f"buffer_load_dwordx4 v{XV+i}, s[8:11], s{60+kc} offen lds"] for kc in range(4) for i in range(4)]
    else:
        xg = [[f"s_add_u32 m0, s54, {kc*4096 + i*1024}", f"s_add_u32 s55, s50, {kc*256}", f"buffer_load_dwordx4 v{XV+i}, s[8:11], s55 offen lds"] for kc in range(4) for i in range(4)]
    for it in xg[:4]:
        for s in it: a(s)
    stamp(a, 1)
    a_main = a; a = Asm()
    make_srd(a, 28, 44, 2*MB, add=WS_YP)
    CR, CI = 64, 80
    a("v_add_u32 v6, s49, v3"); a("v_cvt_f32_u32 v5, v6"); a("v_mul_f32 v5, 0x3c000000, v5")
    a("v_lshlrev_b32 v7, 3, v4"); a("v_cvt_f32_u32 v7, v7")
    a("v_mul_f32 v48, v7, v5")
    for j in range(1, 8): a(f"v_add_f32 v{48+j}, v{48+j-1}, v5")
    for j in range(8): a(f"v_cos_f32 v{56+j}, v{48+j}")
    for j in range(8): a(f"v_sin_f32 v{48+j}, v{48+j}")
    a("v_mov_b32 v44, 0x80008000")
    a("v_and_b32 v45, 2, v3"); a("v_cmp_ne_u32 vcc, 0, v45"); a("v_add_u32 v45, 1, v3"); a("v_cndmask_b32 v46, 0, v44, vcc")
    a("v_and_b32 v45, 2, v45"); a("v_cmp_ne_u32 vcc, 0, v45"); a("v_and_b32 v45, 1, v3"); a("v_cndmask_b32 v47, 0, v44, vcc")
    a("v_cmp_ne_u32 vcc, 0, v45"); a("s_nop 0"); a("v_cndmask_b32 v45, 0, v44, vcc")
    for jp in range(4):
        a(f"v_cvt_pk_bf16_f32 v{CR+jp}, v{56+2*jp}, v{56+2*jp+1}"); a(f"v_cvt_pk_bf16_f32 v{CI+jp}, v{48+2*jp}, v{48+2*jp+1}")
    for jp in range(4):
        a(f"v_cndmask_b32 v{CR+4+jp}, v{CR+jp}, v{CI+jp}, vcc"); a(f"v_cndmask_b32 v{CI+4+jp}, v{CI+jp}, v{CR+jp}, vcc")
    for jp in range(4):
        a(f"v_xor_b32 v{CR+4+jp}, v{CR+4+jp}, v47"); a(f"v_xor_b32 v{CI+4+jp}, v{CI+4+jp}, v46")
    for jp in range(4):
        a(f"v_xor_b32 v{CR+8+jp}, v{CR+jp}, v45"); a(f"v_xor_b32 v{CI+8+jp}, v{CI+jp}, v45")
    for jp in range(4):
        a(f"v_xor_b32 v{CR+12+jp}, v{CR+4+jp}, v45"); a(f"v_xor_b32 v{CI+12+jp}, v{CI+4+jp}, v45")
    TW = 96
    a("v_lshlrev_b32 v5, 2, v4"); a("v_add_u32 v5, s49, v5")
    for i in range(4):
        a(f"v_add_u32 v7, {i}, v5"); a("v_mul_u32_u24 v7, s46, v7"); a("v_cvt_f32_u32 v7, v7"); a("v_mul_f32 v7, 0xba000000, v7")
        a(f"v_cos_f32 v{TW+i}, v7"); a(f"v_sin_f32 v{TW+4+i}, v7")
    a("v_lshlrev_b32 v7, 14, v5"); a("v_lshl_add_u32 v104, v3, 2, v7")
    a("s_lshl_b32 s56, s46, 10"); a("s_lshl_b32 s57, s47, 6"); a("s_add_u32 s56, s56, s57")
    XA, FA = 16, 20
    for sm in range(4):
        a(f"v_add_u32 v5, {4*sm}, v4"); a("v_xor_b32 v5, v5, v3"); a("v_lshlrev_b32 v5, 4, v5")
        a(f"v_lshl_add_u32 v{XA+sm}, v3, 8, v5"); a(f"v_add_u32 v{XA+sm}, s54, v{XA+sm}")
        a(f"v_lshl_add_u32 v{FA+sm}, v3, 10, v5"); a(f"v_add_u32 v{FA+sm}, {R_LDS_F}, v{FA+sm}")
        if ROT: a(f"v_add_u32 v{FA+sm}, s36, v{FA+sm}")
    ONE = 24
    for i in range(4): a(f"v_mov_b32 v{ONE+i}, 0x3f803f80")
    AR, AI, AS = 28, 32, 36
    a("v_mov_b32 v14, 0"); a("v_mov_b32 v15, 0")
    a("v_lshrrev_b32 v5, 3, v3"); a("v_lshlrev_b32 v5, 7, v5"); a("v_lshl_add_u32 v5, v3, 5, v5"); a("v_lshl_add_u32 v5, v4, 3, v5")
    a("v_add_u32 v105, s54, v5")
    a("v_lshrrev_b32 v5, 1, v4"); a("v_lshlrev_b32 v5, 14, v5"); a("v_and_b32 v6, 1, v4"); a("v_mul_u32_u24 v6, 384, v6"); a("v_add_u32 v5, v5, v6")
    a("v_lshrrev_b32 v6, 2, v3"); a("v_lshl_add_u32 v5, v6, 5, v5"); a("v_and_b32 v6, 3, v3"); a("v_lshl_add_u32 v106, v6, 3, v5")
    a("v_add_u32 v107, 65536, v106")
    setup = a.lines; a = a_main
    interleave(a, setup, xg[4:], 0.0, RFRAC)
    a("s_waitcnt vmcnt(12)")
    a("s_barrier")
    stamp(a, 2)
    FB = 108
    def fread(s):
        b = FB + 12*(s % 4); kc, sm = divmod(s, 4)
        a(f"ds_read_b128 {vr(b+8,4)}, v{XA+sm} offset:{4096*kc}")
        ko = 0 if ROT else 256*kc
        a(f"ds_read_b128 {vr(b,4)}, v{FA+sm} offset:{ko}")
        a(f"ds_read_b128 {vr(b+4,4)}, v{FA+sm} offset:{16384 + ko}")
    for kc in range(4):
        if kc > 0: a(f"s_waitcnt vmcnt({12 - 4*kc})")
        for sm in range(4): fread(4*kc + sm)
        if ROT and kc < 3:
            for sm in range(4): a(f"v_add_u32 v{FA+sm}, s{33+kc}, v{FA+sm}")
        for sm in range(4):
            s = 4*kc + sm
            a(f"s_waitcnt lgkmcnt({9 - 3*sm})")
            b = FB + 12*(s % 4); x = b + 8
            a(f"v_mfma_f32_16x16x32_bf16 {vr(AR,4)}, {vr(b,4)}, {vr(x,4)}, {'0' if s == 0 else vr(AR,4)}")
            a(f"v_dot2_f32_bf16 v14, v{x}, v{x}, v14"); a(f"v_dot2_f32_bf16 v15, v{x+1}, v{x+1}, v15")
            a(f"v_mfma_f32_16x16x32_bf16 {vr(AI,4)}, {vr(b+4,4)}, {vr(x,4)}, {'0' if s == 0 else vr(AI,4)}")
            a(f"v_dot2_f32_bf16 v14, v{x+2}, v{x+2}, v14"); a(f"v_dot2_f32_bf16 v15, v{x+3}, v{x+3}, v15")
            a(f"v_mfma_f32_16x16x32_bf16 {vr(AS,4)}, {vr(ONE,4)}, {vr(x,4)}, {'0' if s == 0 else vr(AS,4)}")
    stamp(a, 3)
    a("s_nop 3")
    a("v_add_f32 v14, v14, v15"); a("s_nop 1"); a("v_mov_b32 v15, v14"); a("s_nop 1")
    a("v_permlane32_swap_b32 v14, v15"); a("s_nop 1"); a("v_add_f32 v14, v14, v15"); a("s_nop 1"); a("v_mov_b32 v15, v14"); a("s_nop 1")
    a("v_permlane16_swap_b32 v14, v15"); a("s_nop 1"); a("v_add_f32 v14, v14, v15")
    a(f"v_mul_f32 v15, 0x3b000000, v{AS}")
    a("v_mul_f32 v14, 0x3b000000, v14")
    a("v_fma_f32 v14, -v15, v15, v14")
    a("v_add_f32 v14, 0x3727c5ac, v14")
    a("v_rsq_f32 v14, v14")
    a("s_nop 0")
    for i in range(8): a(f"v_mul_f32 v{AR+i}, v{AR+i}, v14")
    a(f"v_cvt_pk_bf16_f32 v40, v{AR}, v{AR+1}"); a(f"v_cvt_pk_bf16_f32 v41, v{AR+2}, v{AR+3}")
    a(f"v_cvt_pk_bf16_f32 v42, v{AI}, v{AI+1}"); a(f"v_cvt_pk_bf16_f32 v43, v{AI+2}, v{AI+3}")
    a("ds_write_b64 v105, v[40:41]"); a("ds_write_b64 v105, v[42:43] offset:1024")
    A0, A1, A2, A3 = 28, 32, 36, 44
    a("s_waitcnt lgkmcnt(0)")
    a("s_barrier")
    stamp(a, 4)
    ZR, ZI = 108, 124
    for s in range(4):
        ad = "v106" if s < 2 else "v107"; o = (s % 2)*32768
        a(f"ds_read_b64_tr_b16 {vr(ZR+4*s,2)}, {ad} offset:{o}")
        a(f"ds_read_b64_tr_b16 {vr(ZR+4*s+2,2)}, {ad} offset:{o+128}")
        a(f"ds_read_b64_tr_b16 {vr(ZI+4*s,2)}, {ad} offset:{o+1024}")
        a(f"ds_read_b64_tr_b16 {vr(ZI+4*s+2,2)}, {ad} offset:{o+1024+128}")
    for s in range(4):
        a(f"s_waitcnt lgkmcnt({12 - 4*s})")
        a(f"v_mfma_f32_16x16x32_bf16 {vr(A0,4)}, {vr(CR+4*s,4)}, {vr(ZR+4*s,4)}, {'0' if s == 0 else vr(A0,4)}")
        a(f"v_mfma_f32_16x16x32_bf16 {vr(A1,4)}, {vr(CI+4*s,4)}, {vr(ZI+4*s,4)}, {'0' if s == 0 else vr(A1,4)}")
        a(f"v_mfma_f32_16x16x32_bf16 {vr(A2,4)}, {vr(CR+4*s,4)}, {vr(ZI+4*s,4)}, {'0' if s == 0 else vr(A2,4)}")
        a(f"v_mfma_f32_16x16x32_bf16 {vr(A3,4)}, {vr(CI+4*s,4)}, {vr(ZR+4*s,4)}, {'0' if s == 0 else vr(A3,4)}")
    stamp(a, 5)
    a("s_add_u32 s57, s56, 16384"); a("s_add_u32 s58, s56, 32768"); a("s_add_u32 s59, s56, 49152")
    a("s_nop 7")
    for i in range(4):
        a(f"v_add_f32 v{A0+i}, v{A0+i}, v{A1+i}")
        a(f"v_sub_f32 v{A2+i}, v{A2+i}, v{A3+i}")
    for i in range(4):
        a(f"v_mul_f32 v{A1+i}, v{A2+i}, v{TW+4+i}")
        a(f"v_mul_f32 v{A3+i}, v{A2+i}, v{TW+i}")
    for i in range(4):
        a(f"v_fma_f32 v{A1+i}, v{A0+i}, v{TW+i}, -v{A1+i}")
        a(f"v_fma_f32 v{A3+i}, v{A0+i}, v{TW+4+i}, v{A3+i}")
    for i in range(4):
        a(f"v_cvt_pk_bf16_f32 v{48+i}, v{A1+i}, v{A3+i}")
    for i in range(4):
        a(f"buffer_store_dword v{48+i}, v104, s[28:31], s{56+i} offen")
    prof_end(a, 10)
    a(f"{done}:")
    return 160
```

```python
from gen_common import *
import os
RFRAC = float(os.environ.get('RFRAC', '0.5'))
ROT = int(os.environ.get('ROT', '1'))
RS = int(os.environ.get('RS', '0'))
R_LDS_F = 131072
R_LDS = 163840
def NE_CUTS(ne):
    i_tw = next(i for i, l in enumerate(ne) if "v_lshlrev_b32 v5, 2, v4" in l)
    i_mask = next(i for i, l in enumerate(ne) if "v_mov_b32 v44, 0x80008000" in l)
    return [i_mask, i_tw]
def emit_R(a, layer):
    L = a.label
    done = L("r_done")
    load_ptr(a, 4, K_AX if layer == 0 else K_WS)
    load_ptr(a, 40, K_HRE); load_ptr(a, 42, K_HIM); load_ptr(a, 44, K_WS)
    a("s_cmp_ge_u32 s2, 256")
    a(f"s_cbranch_scc1 {done}")
    prof_begin(a)
    a("s_and_b32 s46, s2, 7"); a("s_lshl_b32 s46, s46, 1"); a("s_bfe_u32 s47, s2, 0x10003"); a("s_add_u32 s46, s46, s47")
    a("s_lshr_b32 s47, s2, 4")
    a("v_lshrrev_b32 v1, 6, v0"); a("v_and_b32 v2, 63, v0"); a("v_readfirstlane_b32 s48, v1")
    a("v_and_b32 v3, 15, v2"); a("v_lshrrev_b32 v4, 4, v2")
    XV = 8
    a("s_lshl_b32 s49, s48, 4")
    for i in range(4):
        a(f"v_add_u32 v5, {4*i}, v4"); a("v_xor_b32 v6, v5, v3"); a("v_add_u32 v5, s49, v5")
        if layer == 0:
            a("v_lshlrev_b32 v5, 14, v5")
        else:
            a("v_lshlrev_b32 v5, 10, v5")
        a(f"v_lshl_add_u32 v{XV+i}, v6, 4, v5")
    a(f"s_lshl_b32 s50, s46, {10 if layer == 0 else 17}")
    a("s_and_b32 s51, s48, 3"); a("s_lshl_b32 s51, s51, 2")
    a("s_lshl_b32 s52, s47, 4"); a("s_add_u32 s52, s52, s51")
    a("s_lshl_b32 s53, s48, 12"); a(f"s_add_u32 s53, s53, {R_LDS_F}")
    a("s_lshl_b32 s54, s48, 14")
    FV = 12
    for q in range(4):
        a(f"s_add_u32 s55, s51, {q}"); a("v_xor_b32 v5, s55, v2"); a(f"v_lshlrev_b32 v{FV+q}, 4, v5")
    a("s_waitcnt lgkmcnt(0)")
    make_srd(a, 8, 4, 2*MB, add=(0 if layer == 0 else WS_X2))
    a("s_cmp_ge_u32 s48, 4"); a("s_cselect_b32 s12, s42, s40"); a("s_cselect_b32 s13, s43, s41")
    a("s_mov_b32 s14, 0x80000"); a("s_mov_b32 s15, 0x00020000")
    for q in range(4):
        a(f"s_add_u32 s55, s52, {q}")
        if q == 0:
            a("s_cmp_eq_u32 s55, 0"); a("s_cselect_b32 s55, 256, s55")
        a("s_lshl_b32 s55, s55, 10")
        a(f"s_add_u32 m0, s53, {q*1024}")
        a("s_nop 0")
        a(f"buffer_load_dwordx4 v{FV+q}, s[12:15], s55 offen lds")
    if ROT:
        a("s_add_u32 s60, s48, s47"); a("s_and_b32 s59, s60, 3")
        for kc in range(4):
            a(f"s_add_u32 s{60+kc}, s59, {kc}"); a(f"s_and_b32 s{60+kc}, s{60+kc}, 3"); a(f"s_lshl_b32 s{60+kc}, s{60+kc}, 8")
        for kc in range(3): a(f"s_sub_u32 s{33+kc}, s{61+kc}, s{60+kc}")
        a("s_mov_b32 s36, s60")
        for kc in range(4): a(f"s_add_u32 s{60+kc}, s{60+kc}, s50")
        xg = [[f"s_add_u32 m0, s54, {kc*4096 + i*1024}", "s_nop 0", f"buffer_load_dwordx4 v{XV+i}, s[8:11], s{60+kc} offen lds"] for kc in range(4) for i in range(4)]
    else:
        xg = [[f"s_add_u32 m0, s54, {kc*4096 + i*1024}", f"s_add_u32 s55, s50, {kc*256}", f"buffer_load_dwordx4 v{XV+i}, s[8:11], s55 offen lds"] for kc in range(4) for i in range(4)]
    for it in xg[:(8 if RS else 4)]:
        for s in it: a(s)
    stamp(a, 1)
    a_main = a; a = Asm()
    make_srd(a, 28, 44, 2*MB, add=WS_YP)
    CR, CI = 64, 80
    a("v_add_u32 v6, s49, v3"); a("v_cvt_f32_u32 v5, v6"); a("v_mul_f32 v5, 0x3c000000, v5")
    a("v_lshlrev_b32 v7, 3, v4"); a("v_cvt_f32_u32 v7, v7")
    a("v_mul_f32 v48, v7, v5")
    for j in range(1, 8): a(f"v_add_f32 v{48+j}, v{48+j-1}, v5")
    for j in range(8): a(f"v_cos_f32 v{56+j}, v{48+j}")
    for j in range(8): a(f"v_sin_f32 v{48+j}, v{48+j}")
    a("v_mov_b32 v44, 0x80008000")
    a("v_and_b32 v45, 2, v3"); a("v_cmp_ne_u32 vcc, 0, v45"); a("v_add_u32 v45, 1, v3"); a("v_cndmask_b32 v46, 0, v44, vcc")
    a("v_and_b32 v45, 2, v45"); a("v_cmp_ne_u32 vcc, 0, v45"); a("v_and_b32 v45, 1, v3"); a("v_cndmask_b32 v47, 0, v44, vcc")
    a("v_cmp_ne_u32 vcc, 0, v45"); a("s_nop 0"); a("v_cndmask_b32 v45, 0, v44, vcc")
    for jp in range(4):
        a(f"v_cvt_pk_bf16_f32 v{CR+jp}, v{56+2*jp}, v{56+2*jp+1}"); a(f"v_cvt_pk_bf16_f32 v{CI+jp}, v{48+2*jp}, v{48+2*jp+1}")
    for jp in range(4):
        a(f"v_cndmask_b32 v{CR+4+jp}, v{CR+jp}, v{CI+jp}, vcc"); a(f"v_cndmask_b32 v{CI+4+jp}, v{CI+jp}, v{CR+jp}, vcc")
    for jp in range(4):
        a(f"v_xor_b32 v{CR+4+jp}, v{CR+4+jp}, v47"); a(f"v_xor_b32 v{CI+4+jp}, v{CI+4+jp}, v46")
    for jp in range(4):
        a(f"v_xor_b32 v{CR+8+jp}, v{CR+jp}, v45"); a(f"v_xor_b32 v{CI+8+jp}, v{CI+jp}, v45")
    for jp in range(4):
        a(f"v_xor_b32 v{CR+12+jp}, v{CR+4+jp}, v45"); a(f"v_xor_b32 v{CI+12+jp}, v{CI+4+jp}, v45")
    TW = 96
    a("v_lshlrev_b32 v5, 2, v4"); a("v_add_u32 v5, s49, v5")
    for i in range(4):
        a(f"v_add_u32 v7, {i}, v5"); a("v_mul_u32_u24 v7, s46, v7"); a("v_cvt_f32_u32 v7, v7"); a("v_mul_f32 v7, 0xba000000, v7")
        a(f"v_cos_f32 v{TW+i}, v7"); a(f"v_sin_f32 v{TW+4+i}, v7")
    a("v_lshlrev_b32 v7, 14, v5"); a("v_lshl_add_u32 v104, v3, 2, v7")
    a("s_lshl_b32 s56, s46, 10"); a("s_lshl_b32 s57, s47, 6"); a("s_add_u32 s56, s56, s57")
    ne1 = a.lines; a = Asm()
    XA, FA = 16, 20
    for sm in range(4):
        a(f"v_add_u32 v5, {4*sm}, v4"); a("v_xor_b32 v5, v5, v3"); a("v_lshlrev_b32 v5, 4, v5")
        a(f"v_lshl_add_u32 v{XA+sm}, v3, 8, v5"); a(f"v_add_u32 v{XA+sm}, s54, v{XA+sm}")
        a(f"v_lshl_add_u32 v{FA+sm}, v3, 10, v5"); a(f"v_add_u32 v{FA+sm}, {R_LDS_F}, v{FA+sm}")
        if ROT: a(f"v_add_u32 v{FA+sm}, s36, v{FA+sm}")
    ONE = 24
    for i in range(4): a(f"v_mov_b32 v{ONE+i}, 0x3f803f80")
    AR, AI, AS = 28, 32, 36
    a("v_mov_b32 v14, 0"); a("v_mov_b32 v15, 0")
    ess = a.lines; a = Asm()
    a("v_lshrrev_b32 v5, 3, v3"); a("v_lshlrev_b32 v5, 7, v5"); a("v_lshl_add_u32 v5, v3, 5, v5"); a("v_lshl_add_u32 v5, v4, 3, v5")
    a("v_add_u32 v105, s54, v5")
    a("v_lshrrev_b32 v5, 1, v4"); a("v_lshlrev_b32 v5, 14, v5"); a("v_and_b32 v6, 1, v4"); a("v_mul_u32_u24 v6, 384, v6"); a("v_add_u32 v5, v5, v6")
    a("v_lshrrev_b32 v6, 2, v3"); a("v_lshl_add_u32 v5, v6, 5, v5"); a("v_and_b32 v6, 3, v3"); a("v_lshl_add_u32 v106, v6, 3, v5")
    a("v_add_u32 v107, 65536, v106")
    ne = ne1 + a.lines; a = a_main
    if RS:
        interleave(a, ess, xg[8:12], 0.0, 1.0)
        a("s_waitcnt vmcnt(8)")
        a("s_barrier")
        for it in xg[12:]:
            for s in it: a(s)
    else:
        interleave(a, ne + ess, xg[4:], 0.0, RFRAC)
        ne = []
        a("s_waitcnt vmcnt(12)")
        a("s_barrier")
    nq = (len(ne) + 2)//3
    def ne_part(k):
        lo, hi = k*nq, min((k+1)*nq, len(ne))
        return lo, hi
    stamp(a, 2)
    FB = 108
    def fread(s):
        b = FB + 12*(s % 4); kc, sm = divmod(s, 4)
        a(f"ds_read_b128 {vr(b+8,4)}, v{XA+sm} offset:{4096*kc}")
        ko = 0 if ROT else 256*kc
        a(f"ds_read_b128 {vr(b,4)}, v{FA+sm} offset:{ko}")
        a(f"ds_read_b128 {vr(b+4,4)}, v{FA+sm} offset:{16384 + ko}")
    for kc in range(4):
        if kc > 0:
            if ne:
                cut = [0] + NE_CUTS(ne) + [len(ne)]
                a.lines.extend(ne[cut[kc-1]:cut[kc]])
            a(f"s_waitcnt vmcnt({12 - 4*kc})")
        for sm in range(4): fread(4*kc + sm)
        if ROT and kc < 3:
            for sm in range(4): a(f"v_add_u32 v{FA+sm}, s{33+kc}, v{FA+sm}")
        for sm in range(4):
            s = 4*kc + sm
            a(f"s_waitcnt lgkmcnt({9 - 3*sm})")
            b = FB + 12*(s % 4); x = b + 8
            a(f"v_mfma_f32_16x16x32_bf16 {vr(AR,4)}, {vr(b,4)}, {vr(x,4)}, {'0' if s == 0 else vr(AR,4)}")
            a(f"v_dot2_f32_bf16 v14, v{x}, v{x}, v14"); a(f"v_dot2_f32_bf16 v15, v{x+1}, v{x+1}, v15")
            a(f"v_mfma_f32_16x16x32_bf16 {vr(AI,4)}, {vr(b+4,4)}, {vr(x,4)}, {'0' if s == 0 else vr(AI,4)}")
            a(f"v_dot2_f32_bf16 v14, v{x+2}, v{x+2}, v14"); a(f"v_dot2_f32_bf16 v15, v{x+3}, v{x+3}, v15")
            a(f"v_mfma_f32_16x16x32_bf16 {vr(AS,4)}, {vr(ONE,4)}, {vr(x,4)}, {'0' if s == 0 else vr(AS,4)}")
    stamp(a, 3)
    a("s_nop 3")
    a("v_add_f32 v14, v14, v15"); a("s_nop 1"); a("v_mov_b32 v15, v14"); a("s_nop 1")
    a("v_permlane32_swap_b32 v14, v15"); a("s_nop 1"); a("v_add_f32 v14, v14, v15"); a("s_nop 1"); a("v_mov_b32 v15, v14"); a("s_nop 1")
    a("v_permlane16_swap_b32 v14, v15"); a("s_nop 1"); a("v_add_f32 v14, v14, v15")
    a(f"v_mul_f32 v15, 0x3b000000, v{AS}")
    a("v_mul_f32 v14, 0x3b000000, v14")
    a("v_fma_f32 v14, -v15, v15, v14")
    a("v_add_f32 v14, 0x3727c5ac, v14")
    a("v_rsq_f32 v14, v14")
    a("s_nop 0")
    for i in range(8): a(f"v_mul_f32 v{AR+i}, v{AR+i}, v14")
    a(f"v_cvt_pk_bf16_f32 v40, v{AR}, v{AR+1}"); a(f"v_cvt_pk_bf16_f32 v41, v{AR+2}, v{AR+3}")
    a(f"v_cvt_pk_bf16_f32 v42, v{AI}, v{AI+1}"); a(f"v_cvt_pk_bf16_f32 v43, v{AI+2}, v{AI+3}")
    a("ds_write_b64 v105, v[40:41]"); a("ds_write_b64 v105, v[42:43] offset:1024")
    A0, A1, A2, A3 = 28, 32, 36, 44
    a("s_waitcnt lgkmcnt(0)")
    a("s_barrier")
    stamp(a, 4)
    ZR, ZI = 108, 124
    for s in range(4):
        ad = "v106" if s < 2 else "v107"; o = (s % 2)*32768
        a(f"ds_read_b64_tr_b16 {vr(ZR+4*s,2)}, {ad} offset:{o}")
        a(f"ds_read_b64_tr_b16 {vr(ZR+4*s+2,2)}, {ad} offset:{o+128}")
        a(f"ds_read_b64_tr_b16 {vr(ZI+4*s,2)}, {ad} offset:{o+1024}")
        a(f"ds_read_b64_tr_b16 {vr(ZI+4*s+2,2)}, {ad} offset:{o+1024+128}")
    for s in range(4):
        a(f"s_waitcnt lgkmcnt({12 - 4*s})")
        a(f"v_mfma_f32_16x16x32_bf16 {vr(A0,4)}, {vr(CR+4*s,4)}, {vr(ZR+4*s,4)}, {'0' if s == 0 else vr(A0,4)}")
        a(f"v_mfma_f32_16x16x32_bf16 {vr(A1,4)}, {vr(CI+4*s,4)}, {vr(ZI+4*s,4)}, {'0' if s == 0 else vr(A1,4)}")
        a(f"v_mfma_f32_16x16x32_bf16 {vr(A2,4)}, {vr(CR+4*s,4)}, {vr(ZI+4*s,4)}, {'0' if s == 0 else vr(A2,4)}")
        a(f"v_mfma_f32_16x16x32_bf16 {vr(A3,4)}, {vr(CI+4*s,4)}, {vr(ZR+4*s,4)}, {'0' if s == 0 else vr(A3,4)}")
    stamp(a, 5)
    a("s_add_u32 s57, s56, 16384"); a("s_add_u32 s58, s56, 32768"); a("s_add_u32 s59, s56, 49152")
    a("s_nop 7")
    for i in range(4):
        a(f"v_add_f32 v{A0+i}, v{A0+i}, v{A1+i}")
        a(f"v_sub_f32 v{A2+i}, v{A2+i}, v{A3+i}")
    for i in range(4):
        a(f"v_mul_f32 v{A1+i}, v{A2+i}, v{TW+4+i}")
        a(f"v_mul_f32 v{A3+i}, v{A2+i}, v{TW+i}")
    for i in range(4):
        a(f"v_fma_f32 v{A1+i}, v{A0+i}, v{TW+i}, -v{A1+i}")
        a(f"v_fma_f32 v{A3+i}, v{A0+i}, v{TW+4+i}, v{A3+i}")
    for i in range(4):
        a(f"v_cvt_pk_bf16_f32 v{48+i}, v{A1+i}, v{A3+i}")
    for i in range(4):
        a(f"buffer_store_dword v{48+i}, v104, s[28:31], s{56+i} offen")
    prof_end(a, 10)
    a(f"{done}:")
    return 160
```

```python
import sys
from gen_common import *
from gen_r import *; from gen_c import *; from gen_g1 import *; from gen_g2 import *
import os
SC1 = os.environ.get('SC1', 'r,c,g1,g2').split(',')
def build(extra_empty=0):
    hdr = open("cdna_kernels/" + NAME + ".s.ref").read().split("; Override launch")[0]
    ks = []
    def mk(name, fn):
        a = Asm(); a.uid = 100*len(ks); v = fn(a); a("s_endpgm"); t = a.text()
        if name[0:2].strip('01') in SC1 or name[0:2] in SC1: t = '\n'.join((l + ' sc1' if l.strip().startswith('buffer_store') else l) for l in t.split('\n'))
        ks.append((name, t, v))
    mk("r0_kernel", lambda a: emit_R(a, 0)); mk("c0_kernel", lambda a: emit_C(a, 0)); mk("g1_kernel", emit_G1); mk("g20_kernel", lambda a: emit_G2(a, 0))
    mk("r1_kernel", lambda a: emit_R(a, 1)); mk("c1_kernel", lambda a: emit_C(a, 1)); mk("g21_kernel", lambda a: emit_G2(a, 1))
    L = []
    for l in range(2):
        L.append(f"; @launch kernel=r{l}_kernel grid=(256,1,1) block=(512,1,1) lds={R_LDS}")
        L.append(f"; @launch kernel=c{l}_kernel grid=({256 if (l == 0 and PREFETCH) else 128},1,1) block=(512,1,1) lds={C_LDS}")
        L.append(f"; @launch kernel=g1_kernel grid=(224,1,1) block=(512,1,1) lds={G1_LDS}")
        L.append(f"; @launch kernel=g2{l}_kernel grid=(256,1,1) block=(512,1,1) lds={G2_LDS}")
    if extra_empty:
        mk("e_kernel", lambda a: 8)
        for i in range(extra_empty): L.append("; @launch kernel=e_kernel grid=(256,1,1) block=(512,1,1) lds=0")
    out = hdr + "\n".join(L) + "\n" + '.amdgcn_target "amdgcn-amd-amdhsa--gfx950"\n.text\n'
    for n, t, v in ks: out += kernel_header(n) + t
    out += '.section .rodata,"a"\n.p2align 6\n'
    for n, t, v in ks: out += ".p2align 6\n" + kernel_desc(n, v)
    return out
if __name__ == "__main__":
    e = int(sys.argv[2]) if len(sys.argv) > 2 else 0
    if len(sys.argv) > 3 and sys.argv[3] == "prof": PROF["on"] = True
    open(sys.argv[1] if len(sys.argv) > 1 else "cdna_kernels/" + NAME + ".s", "w").write(build(e))
```
